```python
import torch

def _softmax(x, axis=-1):
    return torch.softmax(x, dim=axis)
def _gelu(x):
    return torch.nn.functional.gelu(x, approximate="tanh")
def _silu(x):
    return torch.nn.functional.silu(x)
def _sigmoid(x):
    return torch.sigmoid(x)
def _layernorm(x, axis=-1, eps=1e-5):
    m = x.mean(dim=axis, keepdim=True)
    v = x.var(dim=axis, keepdim=True, unbiased=False)
    return (x - m) / torch.sqrt(v + eps)
def _scatter_add(tgt, idx, src, axis=0):
    return tgt.clone().index_add_(axis, idx, src)
def _segment_sum(src, seg, n):
    out = torch.zeros((n,) + src.shape[1:], dtype=src.dtype)
    return out.index_add_(0, seg, src)
def _pad(x, pw):
    flat = tuple(v for pair in reversed(pw) for v in pair)
    return torch.nn.functional.pad(x, flat)

kernel_name = 'concat_heads__mha_block_cached__mha_block_cached__decode'

def setup_inputs():

    _w = (lambda a: (lambda t: t.to(torch.bfloat16) if t.is_floating_point() else t)(torch.as_tensor(a)))
    def _A_setup():
        B, Sq, D = 2, 1, 512
        H, Sk, Dh = 32, 8192, 128
        return {
            "x": _w((lambda *s: torch.randn(*s, dtype=torch.bfloat16) * 0.8)(B, Sq, D)),
            "k_cache": _w((lambda *s: torch.randn(*s, dtype=torch.bfloat16) * 0.8)(B, H, Sk, Dh)),
            "v_cache": _w((lambda *s: torch.randn(*s, dtype=torch.bfloat16) * 0.05)(B, H, Sk, Dh)),
            "wq": _w((lambda *s: torch.randn(*s, dtype=torch.bfloat16) * 0.8)(D, H * Dh) * (D ** -0.5)),
            "wo": _w((lambda *s: torch.randn(*s, dtype=torch.bfloat16) * 0.05)(H * Dh, D) * ((H * Dh) ** -0.5)),
        }
    _A_in = _A_setup()

    def _B_setup():
        B, Sq, D = 2, 1, 512
        H, Sk, Dh = 32, 8192, 128
        return {
            "x": _w((lambda *s: torch.randn(*s, dtype=torch.bfloat16) * 0.8)(B, Sq, D)),
            "k_cache": _w((lambda *s: torch.randn(*s, dtype=torch.bfloat16) * 0.8)(B, H, Sk, Dh)),
            "v_cache": _w((lambda *s: torch.randn(*s, dtype=torch.bfloat16) * 0.05)(B, H, Sk, Dh)),
            "wq": _w((lambda *s: torch.randn(*s, dtype=torch.bfloat16) * 0.8)(D, H * Dh) * (D ** -0.5)),
            "wo": _w((lambda *s: torch.randn(*s, dtype=torch.bfloat16) * 0.05)(H * Dh, D) * ((H * Dh) ** -0.5)),
        }
    _B_in = _B_setup()

    return {
        "A_x": _A_in["x"],
        "A_k_cache": _A_in["k_cache"],
        "A_v_cache": _A_in["v_cache"],
        "A_wq": _A_in["wq"],
        "A_wo": _A_in["wo"],
        "B_x": _B_in["x"],
        "B_k_cache": _B_in["k_cache"],
        "B_v_cache": _B_in["v_cache"],
        "B_wq": _B_in["wq"],
        "B_wo": _B_in["wo"],
    }

def reference(A_x, A_k_cache, A_v_cache, A_wq, A_wo, B_x, B_k_cache, B_v_cache, B_wq, B_wo):
    def _A_ref(x, k_cache, v_cache, wq, wo):
        B, Sq, D = x.shape
        H, Dh = 32, 128
        q = (lambda x, *d: x.permute(*d))((x @ wq).reshape(B, Sq, H, Dh), 0, 2, 1, 3)
        scores = torch.einsum("bhqd,bhkd->bhqk", q, k_cache) * (Dh ** -0.5)
        p = _softmax(scores, axis=-1)
        o = torch.einsum("bhqk,bhkd->bhqd", p, v_cache)
        return (lambda x, *d: x.permute(*d))(o, 0, 2, 1, 3).reshape(B, Sq, H * Dh) @ wo

    def _B_ref(x, k_cache, v_cache, wq, wo):
        B, Sq, D = x.shape
        H, Dh = 32, 128
        q = (lambda x, *d: x.permute(*d))((x @ wq).reshape(B, Sq, H, Dh), 0, 2, 1, 3)
        scores = torch.einsum("bhqd,bhkd->bhqk", q, k_cache) * (Dh ** -0.5)
        p = _softmax(scores, axis=-1)
        o = torch.einsum("bhqk,bhkd->bhqd", p, v_cache)
        return (lambda x, *d: x.permute(*d))(o, 0, 2, 1, 3).reshape(B, Sq, H * Dh) @ wo

    a = _A_ref(A_x, A_k_cache, A_v_cache, A_wq, A_wo)
    b = _B_ref(B_x, B_k_cache, B_v_cache, B_wq, B_wo)
    return torch.concatenate([a, b], axis=-1)
```

```python
import sys, math, struct
KN = "concat_heads__mha_block_cached__mha_block_cached__decode_kernel"
K2 = "mha_final_kernel"
C_SCALE = (128 ** -0.5) * math.log2(math.e)
def f2u(f): return struct.unpack("<I", struct.pack("<f", f))[0]
HEADER = open("concat_heads__mha_block_cached__mha_block_cached__decode.s.ref").read().split("; Override launch")[0]
DPPF = "row_mask:0xf bank_mask:0xf"

def desc(A, name, nv, ns):
    A('.section .rodata,"a"'); A(".p2align 6"); A(f".amdhsa_kernel {name}")
    A(f"  .amdhsa_next_free_vgpr {nv}"); A(f"  .amdhsa_next_free_sgpr {ns}"); A(f"  .amdhsa_accum_offset {(nv+3)//4*4}")
    A("  .amdhsa_group_segment_fixed_size 0"); A("  .amdhsa_kernarg_size 104"); A("  .amdhsa_user_sgpr_count 2")
    A("  .amdhsa_user_sgpr_kernarg_segment_ptr 1"); A("  .amdhsa_system_sgpr_workgroup_id_x 1"); A(".end_amdhsa_kernel")

def final_kernel(A, FW=1, DIAG=0):
    A(f".globl {K2}"); A(".p2align 8"); A(f".type {K2},@function"); A(f"{K2}:")
    A("s_load_dwordx2 s[4:5], s[0:1], 80"); A("s_load_dwordx2 s[8:9], s[0:1], 96")
    A(f"s_cmp_ge_u32 s2, {128//FW}"); A("s_cbranch_scc1 L_end2")
    if FW > 1:
        A("v_lshrrev_b32 v1, 6, v0"); A("v_and_b32 v0, 63, v0")
        A(f"s_mul_i32 s2, s2, {FW}")
        A("v_readfirstlane_b32 s3, v1"); A("s_nop 0"); A("s_add_u32 s2, s2, s3")
    A("s_lshr_b32 s12, s2, 5"); A("s_and_b32 s13, s2, 31")
    A("v_lshrrev_b32 v1, 2, v0"); A("v_and_b32 v2, 3, v0")
    A("v_lshlrev_b32 v3, 13, v1"); A("v_lshlrev_b32 v4, 4, v2"); A("v_add_u32 v3, v3, v4")
    A("v_add_u32 v5, 4096, v3")
    A("v_lshlrev_b32 v4, 5, v1")
    A("s_lshl_b32 s14, s12, 17"); A("s_lshl_b32 s15, s13, 6"); A("s_add_u32 s14, s14, s15")
    A("s_lshl_b32 s15, s12, 9"); A(f"s_add_u32 s15, s15, {512*1024}")
    A(f"s_mov_b32 s10, {512*1024+2048}"); A("s_mov_b32 s11, 0x20000")
    A("s_mov_b32 s6, 4096"); A("s_mov_b32 s7, 0x20000")
    A("s_waitcnt lgkmcnt(0)")
    A("buffer_load_dwordx4 v[8:11], v4, s[8:11], s15 offen")
    A("buffer_load_dwordx4 v[12:15], v4, s[8:11], s15 offen offset:16")
    A("buffer_load_dwordx4 v[16:19], v3, s[8:11], s14 offen")
    A("buffer_load_dwordx4 v[20:23], v3, s[8:11], s14 offen offset:2048")
    A("buffer_load_dwordx4 v[24:27], v5, s[8:11], s14 offen")
    A("buffer_load_dwordx4 v[28:31], v5, s[8:11], s14 offen offset:2048")
    A("s_and_b32 s16, s12, 1"); A("s_lshl_b32 s16, s16, 11"); A("s_lshr_b32 s17, s12, 1"); A("s_lshl_b32 s17, s17, 10")
    A("s_add_u32 s16, s16, s17"); A("s_lshl_b32 s17, s13, 5"); A("s_add_u32 s16, s16, s17")
    A("v_lshlrev_b32 v6, 3, v2")
    A("s_waitcnt vmcnt(4)")
    for b in (8, 12):
        A(f"v_max_f32 v32, v{b}, v{b+2}")
        A(f"v_sub_f32 v{b}, v{b}, v32"); A(f"v_sub_f32 v{b+2}, v{b+2}, v32")
        A(f"v_exp_f32 v{b}, v{b}"); A(f"v_exp_f32 v{b+2}, v{b+2}"); A("s_nop 0")
        A(f"v_mul_f32 v33, v{b}, v{b+1}"); A(f"v_fmac_f32 v33, v{b+2}, v{b+3}")
        A(f"v_rcp_f32 v33, v33"); A("s_nop 0")
        A(f"v_mul_f32 v{b}, v{b}, v33"); A(f"v_mul_f32 v{b+2}, v{b+2}, v33")
    A("s_waitcnt vmcnt(0)")
    for c in range(4): A(f"v_mul_f32 v{16+c}, v8, v{16+c}")
    for c in range(4): A(f"v_fmac_f32 v{16+c}, v10, v{20+c}")
    for c in range(4): A(f"v_fmac_f32 v{16+c}, v12, v{24+c}")
    for c in range(4): A(f"v_fmac_f32 v{16+c}, v14, v{28+c}")
    for r in (4, 8):
        A("s_nop 1")
        for c in range(4): A(f"v_add_f32_dpp v{16+c}, v{16+c}, v{16+c} row_ror:{r} {DPPF}")
    for sw in ("v_permlane16_swap_b32", "v_permlane32_swap_b32"):
        for c in range(4): A(f"v_mov_b32 v{20+c}, v{16+c}")
        A("s_nop 1")
        for c in range(4): A(f"{sw} v{16+c}, v{20+c}")
        A("s_nop 1")
        for c in range(4): A(f"v_add_f32 v{16+c}, v{16+c}, v{20+c}")
    A("v_cvt_pk_bf16_f32 v16, v16, v17"); A("v_cvt_pk_bf16_f32 v17, v18, v19")
    A("s_mov_b64 exec, 15")
    A("buffer_store_dwordx2 v[16:17], v6, s[4:7], s16 offen")
    if DIAG:
        A("s_mov_b64 exec, -1")
        A("s_cmp_lg_u32 s2, 0"); A("s_cbranch_scc1 L_end2")
        A("s_load_dwordx2 s[20:21], s[0:1], 88"); A("s_mov_b32 s22, 256"); A("s_mov_b32 s23, 0x20000")
        A(f"s_mov_b32 s10, {512*1024+4096}"); A(f"s_mov_b32 s15, {512*1024+2048}")
        A("v_lshlrev_b32 v4, 4, v0")
        A("buffer_load_dwordx4 v[8:11], v4, s[8:11], s15 offen")
        A("s_waitcnt vmcnt(0) lgkmcnt(0)")
        op = "v_max_u32" if DIAG == 1 else ("v_add_u32" if DIAG == 2 else "v_min_u32")
        A(f"{op} v8, v8, v9"); A(f"{op} v10, v10, v11"); A(f"{op} v8, v8, v10"); A("s_nop 1")
        A(f"{op}_dpp v8, v8, v8 quad_perm:[1,0,3,2] {DPPF}"); A("s_nop 1")
        A(f"{op}_dpp v8, v8, v8 quad_perm:[2,3,0,1] {DPPF}")
        if DIAG == 2: A("v_lshrrev_b32 v8, 4, v8")
        A("v_and_b32 v4, 0xfc, v0")
        A("buffer_store_dword v8, v4, s[20:23], 0 offen")
    A("L_end2:"); A("s_endpgm")

def gen(RING=32, FL="nt", WFL="nt", STAMP=0, MIX=0, RND=0, MUL=2654435761, RJ=0, EARLY=32, PRE=32, WOP=32, WOFL=None, NOWO=0, NOWQ=0, NOCOMP=0, ONLY1=0, STG=0, DIST=0, YFL="", NOP1=0, FW=1, DIAG=0, TOUCH=0, STGO=1):
    GRP = 4
    if not DIST: DIST = RING
    assert DIST <= RING and DIST % 4 == 0
    NT = 16
    TPB = RING // 16
    NITER = NT // TPB
    JS = 4096
    RED, RW, RP = 0, 2176, 1088
    QB = 4 * RW
    MX = QB + 256; LS = MX + 64
    SC = LS + 64
    YB = SC; YW, YP = 2304, 1152
    LDS = SC + 16384
    vOFF, vLANE = 1, 2
    Q = 4; ACC = 8; P = 16; T = 20; TA, TB, U0, U1 = 24, 25, 26, 27
    vM, vSC, PLO, PHI = 28, 29, 30, 32
    vRD, vRW, vX = 33, 34, 35
    TMP = 36
    S16 = 40
    R = 56
    NV = max(R + 4 * RING, R + 132, 136)
    NV = max(NV, 176)
    L = []; A = L.append
    L.append(HEADER.rstrip("\n"))
    A(f"; @launch kernel={KN} grid=(256,1,1) block=(512,1,1) lds={LDS}")
    if not ONLY1: A(f"; @launch kernel={K2} grid=({128//FW},1,1) block=({64*FW},1,1) lds=0")
    A('.amdgcn_target "amdgcn-amd-amdhsa--gfx950"')
    A(".text"); A(f".globl {KN}"); A(".p2align 8"); A(f".type {KN},@function"); A(f"{KN}:")
    def stamp(k):
        if STAMP: A(f"s_memrealtime s[{80+2*k}:{81+2*k}]")
    def stamp_out():
        if not STAMP: return
        A("s_waitcnt vmcnt(0) lgkmcnt(0)")
        stamp(8)
        A("s_getreg_b32 s98, hwreg(HW_REG_XCC_ID)"); A("s_getreg_b32 s99, hwreg(HW_REG_HW_ID)")
        A("s_waitcnt lgkmcnt(0)")
        A("s_lshl_b32 s72, s2, 3"); A("s_add_u32 s72, s72, s62"); A("s_lshl_b32 s72, s72, 6"); A("s_add_u32 s72, s72, 0x100000")
        A("s_mov_b32 s58, 0x200000")
        for k in range(9): A(f"v_mov_b32 v{R+k}, s{80+2*k}")
        A(f"v_mov_b32 v{R+9}, s98"); A(f"v_mov_b32 v{R+10}, s99"); A(f"v_mov_b32 v{R+11}, 0")
        A(f"v_mov_b32 v{TMP+2}, 0"); A("s_mov_b64 exec, 1")
        for k in range(3): A(f"buffer_store_dwordx4 v[{R+4*k}:{R+4*k+3}], v{TMP+2}, s[56:59], s72 offen offset:{16*k}")
    if STAMP:
        for k in range(1, 9): A(f"s_mov_b64 s[{80+2*k}:{81+2*k}], 0")
    if NOP1: A("s_endpgm")
    if DIAG: A("s_memrealtime s[80:81]")
    stamp(0)
    A("s_load_dwordx16 s[4:19], s[0:1], 0")
    A("s_load_dwordx8 s[20:27], s[0:1], 64")
    A("s_load_dwordx2 s[28:29], s[0:1], 96")
    A("s_cmp_ge_u32 s2, 256"); A("s_cbranch_scc1 L_end")
    A("s_and_b32 s30, s2, 7"); A("s_lshr_b32 s31, s2, 3")
    if MIX:
        A("s_bfe_u32 s33, s31, 0x10002")
        A("s_lshl_b32 s32, s30, 2"); A("s_lshr_b32 s34, s31, 3"); A("s_add_u32 s32, s32, s34")
    else:
        A("s_lshl_b32 s32, s30, 3"); A("s_lshr_b32 s33, s31, 2"); A("s_add_u32 s32, s32, s33")
        A("s_lshr_b32 s33, s32, 5"); A("s_and_b32 s32, s32, 31")
    A("s_bfe_u32 s34, s31, 0x10001")
    A("s_and_b32 s35, s31, 1")
    A(f"v_lshrrev_b32 v3, 6, v0"); A(f"v_and_b32 v{vLANE}, 63, v0")
    A("s_lshl_b32 s30, s34, 5"); A("s_add_u32 s30, s30, s32"); A("s_lshl_b32 s30, s30, 1"); A("s_add_u32 s30, s30, s35")
    A(f"v_readfirstlane_b32 s62, v3")
    A("s_lshl_b32 s69, s33, 7"); A("s_add_u32 s69, s69, s30")
    A("s_lshl_b32 s30, s30, 20")
    A("s_mov_b32 s59, 0x20000"); A(f"s_mov_b32 s58, {512*1024+2048}")
    A("s_cmp_ge_u32 s62, 4"); A("s_cbranch_scc1 L_stream")

    def pv(base, lane_n, lo, hi):
        for w in range(4):
            A(f"v_dot2c_f32_bf16_dpp v{ACC+2*w}, v{lo}, v{base+w} row_newbcast:{lane_n} {DPPF}")
            A(f"v_dot2c_f32_bf16_dpp v{ACC+2*w+1}, v{hi}, v{base+w} row_newbcast:{lane_n} {DPPF}")
    def red_write():
        A("s_nop 2")
        A(f"ds_write_b128 v{vRW}, v[{ACC}:{ACC+3}] offset:{RED}")
        A(f"ds_write_b128 v{vRW}, v[{ACC+4}:{ACC+7}] offset:{RED+RP}")
    def red_read_pk(dst):
        for g in range(4): A(f"ds_read_b64 v[{P+2*g}:{P+2*g+1}], v{vRD} offset:{RED + g*256}")
        A("s_waitcnt lgkmcnt(2)")
        A(f"v_add_f32 v{P}, v{P}, v{P+2}"); A(f"v_add_f32 v{P+1}, v{P+1}, v{P+3}")
        A("s_waitcnt lgkmcnt(0)")
        A(f"v_add_f32 v{P+4}, v{P+4}, v{P+6}"); A(f"v_add_f32 v{P+5}, v{P+5}, v{P+7}")
        A(f"v_add_f32 v{P}, v{P}, v{P+4}"); A(f"v_add_f32 v{P+1}, v{P+1}, v{P+5}")
        for sw in ("v_permlane16_swap_b32", "v_permlane32_swap_b32"):
            A(f"v_mov_b32 v{P+2}, v{P}"); A(f"v_mov_b32 v{P+3}, v{P+1}"); A("s_nop 0")
            A(f"{sw} v{P}, v{P+2}"); A(f"{sw} v{P+1}, v{P+3}"); A("s_nop 0")
            A(f"v_add_f32 v{P}, v{P}, v{P+2}"); A(f"v_add_f32 v{P+1}, v{P+1}, v{P+3}")
        A(f"v_cvt_pk_bf16_f32 v{dst}, v{P}, v{P+1}")
    def row_allreduce(op, *vs):
        for r in (8, 4, 2, 1):
            A("s_nop 1" if len(vs) == 1 else "s_nop 0")
            for v in vs: A(f"{op[vs.index(v)] if isinstance(op, list) else op}_dpp v{v}, v{v}, v{v} row_ror:{r} {DPPF}")

    W = R
    A(f"v_lshrrev_b32 v{vX}, 4, v0"); A(f"v_lshlrev_b32 v{vX}, 18, v{vX}")
    A(f"v_and_b32 v{TMP}, 15, v0"); A(f"v_lshlrev_b32 v{TMP+1}, 4, v{TMP}"); A(f"v_add_u32 v{vX}, v{vX}, v{TMP+1}")
    if STG:
        A("s_and_b32 s74, s31, 3"); A("s_lshl_b32 s74, s74, 2")
        A(f"v_add_u32 v{TMP}, s74, v{TMP}"); A(f"v_and_b32 v{TMP}, 15, v{TMP}")
        A(f"v_and_b32 v{TMP+1}, 0xf0, v0"); A(f"v_or_b32 v{TMP+1}, v{TMP+1}, v{TMP}"); A(f"v_lshlrev_b32 v{TMP+1}, 2, v{TMP+1}")
        A(f"v_and_b32 v{U0}, 0x30, v0"); A(f"v_or_b32 v{U0}, v{U0}, v{TMP}")
    else:
        A(f"v_lshlrev_b32 v{TMP+1}, 2, v0")
        A(f"v_mov_b32 v{U0}, v{vLANE}")
    A("s_lshl_b32 s31, s32, 8"); A("s_lshl_b32 s70, s34, 10"); A("s_lshl_b32 s71, s32, 17")
    A("s_mov_b32 s47, 0x20000"); A("s_mov_b32 s51, 0x20000"); A("s_mov_b32 s55, 0x20000")
    A("s_mov_b32 s54, 1024"); A("s_mov_b32 s50, 0x20000"); A("s_sub_u32 s46, 0x400000, s31")
    if NOWO: A("s_mov_b32 s50, 0")
    if NOWQ: A("s_mov_b32 s46, 0")
    if STG: A("s_lshl_b32 s68, s74, 14")
    else: A("s_mov_b32 s68, 0")
    A("s_cmp_eq_u32 s33, 0")
    A("s_waitcnt lgkmcnt(0)")
    A("s_cselect_b64 s[52:53], s[4:5], s[14:15]")
    A("s_cselect_b64 s[44:45], s[10:11], s[20:21]")
    A("s_cselect_b64 s[48:49], s[12:13], s[22:23]")
    A("s_add_u32 s52, s52, s70"); A("s_addc_u32 s53, s53, 0")
    A("s_add_u32 s44, s44, s31"); A("s_addc_u32 s45, s45, 0")
    stamp(1)
    A(f"buffer_load_dword v{TA}, v{TMP+1}, s[52:55], 0 offen")
    for i in range(32):
        A(f"buffer_load_dwordx4 v[{W+4+4*i}:{W+4+4*i+3}], v{vX}, s[44:47], s68 offen {WFL}")
        if i != 31: A("s_add_u32 s68, s68, 8192")
        if STG and i % 8 == 7 and i != 31: A("s_and_b32 s68, s68, 0x3ffff")
    A("s_add_u32 s48, s48, s71"); A("s_addc_u32 s49, s49, 0")
    A("s_mov_b32 s56, s28"); A("s_mov_b32 s57, s29")
    A(f"s_mov_b32 s63, {f2u(C_SCALE)}")
    A("s_mov_b32 s64, 0x05040100"); A("s_mov_b32 s65, 0x07060302")
    A(f"s_mul_i32 s72, s62, {RW}")
    A(f"v_lshlrev_b32 v{vRW}, 4, v{vLANE}"); A(f"v_add_u32 v{vRW}, s72, v{vRW}")
    def calc_rd(U0):
        A(f"v_lshrrev_b32 v{TMP+2}, 4, v{U0}"); A(f"v_mul_u32_u24 v{vRD}, {RW}, v{TMP+2}")
        A(f"v_bfe_u32 v{TMP+2}, v{U0}, 1, 1"); A(f"v_mul_u32_u24 v{TMP+2}, {RP}, v{TMP+2}"); A(f"v_add_u32 v{vRD}, v{vRD}, v{TMP+2}")
        A(f"v_bfe_u32 v{TMP+2}, v{U0}, 2, 2"); A(f"v_lshlrev_b32 v{TMP+2}, 4, v{TMP+2}"); A(f"v_add_u32 v{vRD}, v{vRD}, v{TMP+2}")
        A(f"v_and_b32 v{TMP+2}, 1, v{U0}"); A(f"v_lshlrev_b32 v{TMP+2}, 3, v{TMP+2}"); A(f"v_add_u32 v{vRD}, v{vRD}, v{TMP+2}")
        A(f"s_lshl_b32 s73, s62, 6"); A(f"v_add_u32 v{vRD}, s73, v{vRD}")
    calc_rd(U0)
    A(f"s_lshl_b32 s72, s62, 6")
    A(f"v_lshlrev_b32 v{TMP}, 2, v{TMP}"); A(f"v_add_u32 v{TMP}, s72, v{TMP}")
    for e in range(8): A(f"v_mov_b32 v{ACC+e}, 0")
    XEL, XEH, XOL, XOH = T, T+1, T+2, T+3
    for q in range(8):
        A(f"s_waitcnt vmcnt({28-4*q})")
        if q == 0:
            stamp(4)
            if EARLY < RING: A("s_barrier")
            A(f"v_and_b32 v{XEL}, 0xffff, v{TA}"); A(f"v_lshlrev_b32 v{XEH}, 16, v{TA}")
            A(f"v_lshrrev_b32 v{XOL}, 16, v{TA}"); A(f"v_and_b32 v{XOH}, 0xffff0000, v{TA}"); A("s_nop 1")
        for i in range(4*q, 4*q+4):
            if i & 1: pv(W+4+4*i, i >> 1, XOL, XOH)
            else:     pv(W+4+4*i, i >> 1, XEL, XEH)
    stamp(2)
    red_write()
    A(f"s_lshl_b32 s75, s62, 15")
    A(f"v_lshlrev_b32 v{vX}, 4, v{vLANE}"); A(f"v_add_u32 v{vX}, s75, v{vX}")
    if STG and STGO: A("s_lshl_b32 s72, s74, 11")
    else: A("s_mov_b32 s72, 0")
    A("s_waitcnt lgkmcnt(0)"); A("s_barrier")
    stamp(5)
    red_read_pk(TA)
    A(f"ds_write_b32 v{TMP}, v{TA} offset:{QB}")
    A("s_waitcnt lgkmcnt(0)"); A("s_barrier")
    stamp(3)
    if TOUCH:
        A("s_cmp_lg_u32 s62, 1"); A("s_cbranch_scc1 L_notouch")
        A("s_mov_b64 exec, 1"); A(f"v_mov_b32 v{U1}, 0")
        A("s_mov_b32 s38, 64"); A("s_mov_b32 s39, 0x20000")
        if TOUCH & 1:
            A("s_cmp_eq_u32 s33, 0"); A("s_cselect_b64 s[36:37], s[8:9], s[18:19]")
            A("s_add_u32 s36, s36, s30"); A("s_addc_u32 s37, s37, 0")
            A(f"buffer_load_dword v{U0}, v{U1}, s[36:39], 0 offen nt")
        if TOUCH & 2:
            A("s_mov_b32 s40, s24"); A("s_mov_b32 s41, s25"); A("s_mov_b32 s42, 64"); A("s_mov_b32 s43, 0x20000")
            A(f"buffer_load_dword v{U0}, v{U1}, s[40:43], 0 offen nt")
        A("s_mov_b64 exec, -1")
        A("L_notouch:")
    if WOFL is None: WOFL = WFL
    def wo_issue(i):
        A(f"buffer_load_dwordx4 v[{W+4+4*i}:{W+4+4*i+3}], v{vX}, s[48:51], s72 offen offset:{(i&3)*1024} {WOFL}")
        if i & 3 == 3: A("s_add_u32 s72, s72, 4096")
        if STG and i & 7 == 7: A("s_and_b32 s72, s72, 0x7fff")
    for i in range(WOP): wo_issue(i)
    if STG and not STGO: calc_rd(vLANE)
    A(f"s_mul_i32 s73, s62, {YW}")
    A(f"v_lshlrev_b32 v{vRW}, 4, v{vLANE}"); A(f"v_add_u32 v{vRW}, s73, v{vRW}")
    A(f"v_bfe_u32 v{TMP+1}, v0, 1, 1"); A(f"v_mul_u32_u24 v{TMP+1}, {YP}, v{TMP+1}")
    A(f"v_lshrrev_b32 v{TMP+2}, 2, v0"); A(f"v_lshlrev_b32 v{TMP+2}, 4, v{TMP+2}"); A(f"v_add_u32 v{TMP+1}, v{TMP+1}, v{TMP+2}")
    A(f"v_and_b32 v{TMP+2}, 1, v0"); A(f"v_lshlrev_b32 v{TMP+2}, 3, v{TMP+2}"); A(f"v_add_u32 v{TMP+1}, v{TMP+1}, v{TMP+2}")
    A(f"v_lshlrev_b32 v{TMP+3}, 3, v0")
    def LO(r): return W if r == 0 else W + 4 + 8*(r-1)
    def HI(r): return W + 8 + 8*r
    for r in range(16):
        issued = min(32, WOP + 2*r)
        A(f"s_waitcnt vmcnt({issued - (2*r+2)})")
        for i in range(issued, min(32, issued+2)): wo_issue(i)
        a = W+4+8*r; b = a+4
        for k in range(4):
            A(f"v_perm_b32 v{LO(r)+k}, v{b+k}, v{a+k}, s64")
            A(f"v_perm_b32 v{b+k}, v{b+k}, v{a+k}, s65")
    for e in range(8): A(f"v_mov_b32 v{ACC+e}, 0")
    A(f"v_and_b32 v{TMP}, 15, v0"); A(f"v_lshlrev_b32 v{TMP}, 2, v{TMP}")
    A("s_barrier")
    A("s_barrier")
    A("s_cmp_lg_u32 s62, 0"); A("s_cbranch_scc1 L_nostat")
    A(f"ds_read_b32 v{TA}, v{TMP} offset:{MX}"); A(f"ds_read_b32 v{TB}, v{TMP} offset:{LS}")
    A("s_waitcnt lgkmcnt(0)")
    row_allreduce(["v_max_f32", "v_add_f32"], TA, TB)
    A(f"v_mul_f32 v{TA}, s63, v{TA}")
    A(f"s_lshl_b32 s72, s69, 3"); A(f"s_add_u32 s72, s72, {512*1024}")
    A(f"v_mov_b32 v{TMP+2}, 0")
    A("s_mov_b64 exec, 1")
    A(f"buffer_store_dwordx2 v[{TA}:{TB}], v{TMP+2}, s[56:59], s72 offen")
    A("s_mov_b64 exec, -1")
    A("L_nostat:")
    A(f"s_lshl_b32 s72, s69, 11")
    A("s_barrier")
    stamp(6)
    red_read_pk(TA)
    A("s_nop 1")
    for r in range(16):
        for k in range(4):
            A(f"v_dot2c_f32_bf16_dpp v{ACC+2*k}, v{TA}, v{LO(r)+k} row_newbcast:{r} {DPPF}")
            A(f"v_dot2c_f32_bf16_dpp v{ACC+2*k+1}, v{TA}, v{HI(r)+k} row_newbcast:{r} {DPPF}")
    A("s_nop 2")
    A(f"ds_write_b128 v{vRW}, v[{ACC}:{ACC+3}] offset:{YB}")
    A(f"ds_write_b128 v{vRW}, v[{ACC+4}:{ACC+7}] offset:{YB+YP}")
    A("s_waitcnt lgkmcnt(0)"); A("s_barrier")
    for k in range(4): A(f"ds_read_b64 v[{P+2*k}:{P+2*k+1}], v{TMP+1} offset:{YB + k*YW}")
    A("s_waitcnt lgkmcnt(2)")
    A(f"v_add_f32 v{P}, v{P}, v{P+2}"); A(f"v_add_f32 v{P+1}, v{P+1}, v{P+3}")
    A("s_waitcnt lgkmcnt(0)")
    A(f"v_add_f32 v{P+4}, v{P+4}, v{P+6}"); A(f"v_add_f32 v{P+5}, v{P+5}, v{P+7}")
    A(f"v_add_f32 v{P}, v{P}, v{P+4}"); A(f"v_add_f32 v{P+1}, v{P+1}, v{P+5}")
    A(f"buffer_store_dwordx2 v[{P}:{P+1}], v{TMP+3}, s[56:59], s72 offen {YFL}")
    stamp(7)
    stamp_out()
    if DIAG:
        A("s_cmp_lg_u32 s62, 0"); A("s_cbranch_scc1 L_nodiag")
        A("s_memrealtime s[82:83]"); A("s_waitcnt lgkmcnt(0)")
        A("s_sub_u32 s82, s82, s80")
        A("s_lshl_b32 s83, s69, 2"); A(f"s_add_u32 s83, s83, {512*1024+2048}"); A(f"s_mov_b32 s58, {512*1024+4096}")
        A(f"v_mov_b32 v{TA}, s82"); A(f"v_mov_b32 v{TB}, 0"); A("s_mov_b64 exec, 1")
        A(f"buffer_store_dword v{TA}, v{TB}, s[56:59], s83 offen")
        A("L_nodiag:")
    A("s_endpgm")

    A(".p2align 6")
    A("L_stream:")
    A(f"v_and_b32 v{vOFF}, 255, v0"); A(f"v_lshlrev_b32 v{vOFF}, 4, v{vOFF}")
    A("s_mov_b32 s39, 0x20000"); A("s_mov_b32 s38, 0x100000")
    if RJ:
        RND = 1
        A("s_lshr_b32 s60, s2, 3"); A(f"s_mul_i32 s60, s60, {RJ*4096}"); A("s_and_b32 s60, s60, 0xff000")
    elif RND:
        A(f"s_mul_i32 s60, s2, {MUL}"); A("s_lshr_b32 s60, s60, 12"); A("s_and_b32 s60, s60, 0xff000")
    else:
        A("s_mov_b32 s60, 0")
    A("s_cmp_eq_u32 s33, 0")
    A("s_waitcnt lgkmcnt(0)")
    A("s_cselect_b64 s[36:37], s[6:7], s[16:17]")
    A("s_cselect_b64 s[40:41], s[8:9], s[18:19]")
    A("s_add_u32 s36, s36, s30"); A("s_addc_u32 s37, s37, 0")
    stamp(1)
    def issue(j):
        A(f"buffer_load_dwordx4 v[{R+4*j}:{R+4*j+3}], v{vOFF}, s[36:39], s60 offen {FL}")
        A(f"s_add_u32 s60, s60, {JS}")
        if RND: A("s_and_b32 s60, s60, 0xfffff")
    for j in range(min(PRE, DIST)):
        if j == EARLY: A("s_barrier")
        issue(j)
    stamp(2)
    A("s_add_u32 s40, s40, s30"); A("s_addc_u32 s41, s41, 0")
    A("s_mov_b32 s56, s28"); A("s_mov_b32 s57, s29")
    A(f"s_mov_b32 s63, {f2u(C_SCALE)}")
    A("s_mov_b32 s64, 0xcccccccc"); A("s_mov_b32 s65, 0xcccccccc"); A("s_mov_b32 s66, 0xaaaaaaaa"); A("s_mov_b32 s67, 0xaaaaaaaa")
    A("s_sub_u32 s73, s62, 4")
    A(f"s_mul_i32 s72, s73, {RW}")
    A(f"v_lshlrev_b32 v{vRW}, 4, v{vLANE}"); A(f"v_add_u32 v{vRW}, s72, v{vRW}")
    A(f"s_lshl_b32 s72, s73, 12"); A(f"s_add_u32 s72, s72, {SC}")
    A(f"v_lshlrev_b32 v{vSC}, 2, v{vLANE}"); A(f"v_add_u32 v{vSC}, s72, v{vSC}")
    A(f"v_mov_b32 v{vM}, 0xff800000")
    for e in range(8): A(f"v_mov_b32 v{ACC+e}, 0")
    A(f"v_and_b32 v{TMP+1}, 15, v0"); A(f"v_lshlrev_b32 v{TB}, 4, v{TMP+1}"); A(f"v_lshlrev_b32 v{TMP+1}, 2, v{TMP+1}")
    A(f"v_bfe_u32 v{TMP}, v0, 4, 4"); A(f"v_lshlrev_b32 v{TMP}, 2, v{TMP}")
    A("s_mov_b32 s61, 0")
    A("s_barrier")
    A("s_barrier")
    A(f"ds_read_b128 v[{Q}:{Q+3}], v{TB} offset:{QB}")
    for j in range(min(PRE, DIST), DIST): issue(j)
    stamp(3)
    A("s_waitcnt lgkmcnt(0)")
    A(".p2align 3")
    A("L_k:")
    for t in range(TPB):
        for q in range(4):
            j0 = t*16 + q*4
            if j0 == RING - DIST:
                A(f"s_cmp_eq_u32 s61, {NITER-1}")
                A("s_cselect_b32 s36, s40, s36"); A("s_cselect_b32 s37, s41, s37")
                if not RND: A("s_cselect_b32 s60, 0, s60")
            A(f"s_waitcnt vmcnt({DIST-GRP})")
            for w in range(4):
                for jj in range(4):
                    src2 = "0" if w == 0 else f"v{P+jj}"
                    if not NOCOMP or w == 0: A(f"v_dot2_f32_bf16 v{P+jj}, v{R+4*(j0+jj)+w}, v{Q+w}, {src2}")
            for jj in range(4): issue((j0+jj+DIST) % RING)
            A(f"v_add_f32_dpp v{P}, v{P}, v{P} row_ror:8 row_mask:0xf bank_mask:0x3")
            A(f"v_add_f32_dpp v{P+2}, v{P+2}, v{P+2} row_ror:8 row_mask:0xf bank_mask:0x3")
            A(f"v_add_f32_dpp v{P}, v{P+1}, v{P+1} row_ror:8 row_mask:0xf bank_mask:0xc")
            A(f"v_add_f32_dpp v{P+2}, v{P+3}, v{P+3} row_ror:8 row_mask:0xf bank_mask:0xc")
            A("s_nop 0")
            A(f"v_add_f32_dpp v{T+q}, v{P}, v{P} row_half_mirror row_mask:0xf bank_mask:0x5")
            A(f"v_add_f32_dpp v{T+q}, v{P+2}, v{P+2} row_half_mirror row_mask:0xf bank_mask:0xa")
        A(f"v_add_f32_dpp v{TA}, v{T}, v{T} quad_perm:[2,3,0,1] {DPPF}")
        A(f"v_add_f32_dpp v{TB}, v{T+1}, v{T+1} quad_perm:[2,3,0,1] {DPPF}")
        A(f"v_add_f32_dpp v{P}, v{T+2}, v{T+2} quad_perm:[2,3,0,1] {DPPF}")
        A(f"v_add_f32_dpp v{P+1}, v{T+3}, v{T+3} quad_perm:[2,3,0,1] {DPPF}")
        A(f"v_cndmask_b32 v{U0}, v{TA}, v{TB}, s[64:65]")
        A(f"v_cndmask_b32 v{U1}, v{P}, v{P+1}, s[64:65]")
        A("s_nop 0")
        A(f"v_add_f32_dpp v{TA}, v{U0}, v{U0} quad_perm:[1,0,3,2] {DPPF}")
        A(f"v_add_f32_dpp v{TB}, v{U1}, v{U1} quad_perm:[1,0,3,2] {DPPF}")
        A(f"v_cndmask_b32 v{TA}, v{TA}, v{TB}, s[66:67]")
        A(f"v_max_f32 v{vM}, v{vM}, v{TA}")
        A(f"ds_write_b32 v{vSC}, v{TA} offset:{t*256}")
    A(f"v_add_u32 v{vSC}, {TPB*256}, v{vSC}")
    A("s_add_u32 s61, s61, 1"); A(f"s_cmp_lt_u32 s61, {NITER}"); A("s_cbranch_scc1 L_k")
    stamp(4)
    A(f"v_subrev_u32 v{vSC}, {NT*256}, v{vSC}")
    row_allreduce("v_max_f32", vM)
    A(f"ds_write_b32 v{TMP}, v{vM} offset:{MX}")
    A("s_waitcnt lgkmcnt(0)"); A("s_barrier")
    A(f"ds_read_b32 v{vM}, v{TMP+1} offset:{MX}")
    for t in range(0, NT, 2): A(f"ds_read2st64_b32 v[{S16+t}:{S16+t+1}], v{vSC} offset0:{t} offset1:{t+1}")
    A(f"s_waitcnt lgkmcnt({NT//2})")
    row_allreduce("v_max_f32", vM)
    A(f"v_mul_f32 v{vM}, s63, v{vM}")
    A("s_waitcnt lgkmcnt(0)")
    for t in range(NT): A(f"v_fma_f32 v{S16+t}, v{S16+t}, s63, -v{vM}")
    for t in range(NT): A(f"v_exp_f32 v{S16+t}, v{S16+t}")
    A("s_nop 0")
    A(f"v_add_f32 v{TA}, v{S16}, v{S16+1}")
    for t in range(2, NT): A(f"v_add_f32 v{TA}, v{TA}, v{S16+t}")
    for t in range(NT): A(f"v_cvt_pk_bf16_f32 v{S16+t}, v{S16+t}, 0")
    for t in range(0, NT, 2): A(f"ds_write2st64_b32 v{vSC}, v{S16+t}, v{S16+t+1} offset0:{t} offset1:{t+1}")
    row_allreduce("v_add_f32", TA)
    A(f"ds_write_b32 v{TMP}, v{TA} offset:{LS}")
    A("s_mov_b32 s61, 0")
    stamp(5)
    A("s_waitcnt lgkmcnt(0)"); A("s_barrier")
    def nlane(j):
        q, jj = j >> 2, j & 3
        return ((jj & 1) << 3) | ((jj >> 1) << 2) | ((q & 1) << 1) | (q >> 1)
    A(".p2align 3")
    A("L_v:")
    for t in range(TPB): A(f"ds_read_b32 v{PLO+t}, v{vSC} offset:{t*256}")
    A(f"v_add_u32 v{vSC}, {TPB*256}, v{vSC}")
    for t in range(TPB):
        for q in range(4):
            j0 = t*16 + q*4
            if j0 == RING - DIST:
                A(f"s_cmp_eq_u32 s61, {NITER-1}")
                A("s_cselect_b32 s38, 0, s38")
            if t == 0 and q == 0: A(f"s_waitcnt vmcnt({DIST-GRP}) lgkmcnt(0)")
            else: A(f"s_waitcnt vmcnt({DIST-GRP})")
            if q == 0:
                A(f"v_lshlrev_b32 v{PHI}, 16, v{PLO+t}"); A("s_nop 1")
            for jj in range(1 if NOCOMP else 4): pv(R+4*(j0+jj), nlane(q*4+jj), PLO+t, PHI)
            for jj in range(4): issue((j0+jj+DIST) % RING)
    A("s_add_u32 s61, s61, 1"); A(f"s_cmp_lt_u32 s61, {NITER}"); A("s_cbranch_scc1 L_v")
    stamp(6)
    red_write()
    A("s_waitcnt lgkmcnt(0)"); A("s_barrier")
    stamp_out()
    A("L_end:"); A("s_endpgm")
    final_kernel(A, FW, DIAG)
    desc(A, KN, NV, 100 if (STAMP or DIAG) else 80)
    desc(A, K2, 40, 24)
    return "\n".join(L) + "\n"
if __name__ == "__main__":
    from build import build
    import json
    names = []
    for spec in sys.argv[1:]:
        kw = {}
        for kv in spec.split(","):
            if not kv: continue
            k, v = kv.split("=")
            kw[k] = v.replace("+", " ").replace("none", "") if k in ("FL", "WFL", "WOFL", "YFL") else int(v)
        name = "k2_" + spec.replace(",", "_").replace("=", "").replace("+", "")
        p = f"dev/{name}.s"; open(p, "w").write(gen(**kw)); build(p); names.append(name)
    print(" ".join(n + ".s" for n in names))
    print(json.dumps(["dev/bench", "dev/ana.py"] + [f"dev/{n}.s" for n in names] + [f"dev/{n}.co" for n in names]))
```

```python
import sys
from gen2 import gen
from build import build

def make_probe(text, pset, phase):
    i0 = text.index(".p2align 6\nL_stream:")
    i1 = text.index("L_end:\ns_endpgm")
    sec = text[i0:i1]
    c1 = sec.replace("L_stream:", "L_stream1:").replace("L_k", "L_k1").replace("L_v", "L_v1")
    k0, k1 = c1.index("L_k1:"), c1.index("s_cbranch_scc1 L_k1")
    v0, v1 = c1.index("L_v1:"), c1.index("s_cbranch_scc1 L_v1")
    if phase == 0: c1 = c1[:k1].replace(" offen nt", " offen") + c1[k1:]
    else: c1 = c1[:v0] + c1[v0:v1].replace(" offen nt", " offen") + c1[v1:]
    sec0 = sec.replace("L_stream:\n", f"L_stream:\ns_cmp_eq_u32 s33, {pset}\ns_cbranch_scc1 L_stream1\n")
    return text[:i0] + sec0 + "s_endpgm\n" + c1 + text[i1:]

t = gen(RJ=4, STG=1, RING=16, PRE=8)
for pset in (0, 1):
    for ph in (0, 1):
        p = f"probe_s{pset}_p{ph}.s"
        open(p, "w").write(make_probe(t, pset, ph)); build(p); print(p)
```
